```python
import torch

def _softmax(x, axis=-1):
    return torch.softmax(x, dim=axis)
def _gelu(x):
    return torch.nn.functional.gelu(x, approximate="tanh")
def _silu(x):
    return torch.nn.functional.silu(x)
def _sigmoid(x):
    return torch.sigmoid(x)
def _layernorm(x, axis=-1, eps=1e-5):
    m = x.mean(dim=axis, keepdim=True)
    v = x.var(dim=axis, keepdim=True, unbiased=False)
    return (x - m) / torch.sqrt(v + eps)
def _scatter_add(tgt, idx, src, axis=0):
    return tgt.clone().index_add_(axis, idx, src)
def _segment_sum(src, seg, n):
    out = torch.zeros((n,) + src.shape[1:], dtype=src.dtype)
    return out.index_add_(0, seg, src)
def _pad(x, pw):
    flat = tuple(v for pair in reversed(pw) for v in pair)
    return torch.nn.functional.pad(x, flat)

kernel_name = 'gated_mix__sliding_local_dilated__mixer_token_mlp__prompt'

def setup_inputs():

    _w = (lambda a: (lambda t: t.to(torch.bfloat16) if t.is_floating_point() else t)(torch.as_tensor(a)))
    def _A_setup():
        B, S, D = 1, 2048, 512
        return {
            "x": _w((lambda *s: torch.randn(*s, dtype=torch.bfloat16) * 0.05)(B, S, D)),
            "wqkv": _w((lambda *s: torch.randn(*s, dtype=torch.bfloat16) * 0.8)(D, 3 * D)),
            "wo": _w((lambda *s: torch.randn(*s, dtype=torch.bfloat16) * 0.05)(D, D)),
        }
    _A_in = _A_setup()

    def _B_setup():
        B, S, D, F = 1, 2048, 512, 1792
        return {
            "x": _w((lambda *s: torch.randn(*s, dtype=torch.bfloat16) * 0.05)(B, S, D)),
            "w1": _w((lambda *s: torch.randn(*s, dtype=torch.bfloat16) * 1.6)(S, F) * (S ** -0.5)),
            "b1": _w((lambda *s: torch.randn(*s, dtype=torch.bfloat16) * 12.8)(F) * 0.02),
            "w2": _w((lambda *s: torch.randn(*s, dtype=torch.bfloat16) * 0.4)(F, S) * (F ** -0.5)),
            "b2": _w((lambda *s: torch.randn(*s, dtype=torch.bfloat16) * 6.4)(S) * 0.02),
        }
    _B_in = _B_setup()

    return {
        "A_x": _A_in["x"],
        "A_wqkv": _A_in["wqkv"],
        "A_wo": _A_in["wo"],
        "B_x": _B_in["x"],
        "B_w1": _B_in["w1"],
        "B_b1": _B_in["b1"],
        "B_w2": _B_in["w2"],
        "B_b2": _B_in["b2"],
        "gate_w": _w((lambda *s: torch.randn(*s, dtype=torch.bfloat16) * 0.05)(512) * 16.0),
    }

def reference(A_x, A_wqkv, A_wo, B_x, B_w1, B_b1, B_w2, B_b2, gate_w):
    def _A_ref(x, wqkv, wo):
        B, S, D = x.shape
        H = 32; Dh = D // H
        W, dil = 8, 2
        qkv = (lambda x, *d: x.permute(*d))((x @ wqkv).reshape(B, S, 3, H, Dh), 2, 0, 3, 1, 4)
        q, k, v = qkv[0], qkv[1], qkv[2]
        scale = Dh ** -0.5
        pos = torch.arange(S)
        off = torch.arange(W) * dil
        idx = pos[:, None] - off[None, :]
        mask = idx >= 0
        idx_c = torch.where(mask, idx, 0).reshape(-1)
        kg = k[:, :, idx_c, :].reshape(B, H, S, W, Dh)
        vg = v[:, :, idx_c, :].reshape(B, H, S, W, Dh)
        logits = torch.einsum("bhsd,bhswd->bhsw", q, kg) * scale
        logits = torch.where(mask[None, None, :, :], logits, -1e9)
        attn = _softmax(logits, axis=-1)
        o = torch.einsum("bhsw,bhswd->bhsd", attn, vg)
        return (lambda x, *d: x.permute(*d))(o, 0, 2, 1, 3).reshape(B, S, D) @ wo

    def _B_ref(x, w1, b1, w2, b2):
        B, S, D = x.shape
        h = _layernorm(x, axis=-1)
        u = torch.einsum("bsd,sf->bdf", h, w1) + b1
        u = _gelu(u)
        y = torch.einsum("bdf,fs->bds", u, w2) + b2
        return (lambda x, *d: x.permute(*d))(y, 0, 2, 1)

    x = A_x
    g = _sigmoid((x * gate_w).sum(-1, keepdims=True))
    a = _A_ref(x, A_wqkv, A_wo)
    b = _B_ref(x, B_w1, B_b1, B_w2, B_b2)
    return g * a + (1 - g) * b
```

```python
class Asm:
    def __init__(self):
        self.lines = []
        self._lab = 0

    def __call__(self, s):
        self.lines.append("    " + s)

    def raw(self, s):
        self.lines.append(s)

    def label(self, name):
        self.lines.append(name + ":")

    def newlabel(self, base):
        self._lab += 1
        return "%s_%d" % (base, self._lab)

    def comment(self, s):
        self.lines.append("    ; " + s)

    def text(self):
        return "\n".join(self.lines) + "\n"


def v(i, n=1):
    return "v%d" % i if n == 1 else "v[%d:%d]" % (i, i + n - 1)


def s(i, n=1):
    return "s%d" % i if n == 1 else "s[%d:%d]" % (i, i + n - 1)


class RegAlloc:
    def __init__(self, start, limit):
        self.next = start
        self.limit = limit
        self.high = start

    def alloc(self, n=1, align=1):
        a = (self.next + align - 1) // align * align
        self.next = a + n
        assert self.next <= self.limit, "out of registers"
        self.high = max(self.high, self.next)
        return a

    def mark(self):
        return self.next

    def release(self, m):
        self.next = m
```

```python
import sys
from asmlib import Asm, RegAlloc, v, s

NAME = "gated_mix__sliding_local_dilated__mixer_token_mlp__prompt"

WS_H = 0
WS_O = 2 << 20
WS_U = 4 << 20
WS_G = 6 << 20

LOG2E = 0x3FB8AA3B
SRD3 = 0x00020000


def make_srd(a, sd, sp, nbytes, add=0):
    if add:
        a("s_add_u32 %s, %s, 0x%x" % (s(sd), s(sp), add))
        a("s_addc_u32 %s, %s, 0" % (s(sd + 1), s(sp + 1)))
        a("s_and_b32 %s, %s, 0xffff" % (s(sd + 1), s(sd + 1)))
    else:
        a("s_mov_b32 %s, %s" % (s(sd), s(sp)))
        a("s_and_b32 %s, %s, 0xffff" % (s(sd + 1), s(sp + 1)))
    a("s_mov_b32 %s, 0x%x" % (s(sd + 2), nbytes))
    a("s_mov_b32 %s, 0x%x" % (s(sd + 3), SRD3))


def descriptor(a, name, nvgpr, nsgpr):
    acc = (nvgpr + 3) // 4 * 4
    a.raw(".amdhsa_kernel %s" % name)
    a.raw("  .amdhsa_next_free_vgpr %d" % nvgpr)
    a.raw("  .amdhsa_next_free_sgpr %d" % nsgpr)
    a.raw("  .amdhsa_accum_offset %d" % acc)
    a.raw("  .amdhsa_group_segment_fixed_size 0")
    a.raw("  .amdhsa_kernarg_size 96")
    a.raw("  .amdhsa_user_sgpr_count 2")
    a.raw("  .amdhsa_user_sgpr_kernarg_segment_ptr 1")
    a.raw("  .amdhsa_system_sgpr_workgroup_id_x 1")
    a.raw(".end_amdhsa_kernel")


def kernel_head(a, name):
    a.raw(".globl %s" % name)
    a.raw(".p2align 8")
    a.raw(".type %s,@function" % name)
    a.label(name)


def emit_tr_addr(a, vd, vl, vt0, vt1, rb_src, base_imm=0):
    a("v_lshrrev_b32 %s, 5, %s" % (v(vd), v(vl)))
    a("v_lshlrev_b32 %s, 3, %s" % (v(vd), v(vd)))
    a("v_bfe_u32 %s, %s, 2, 2" % (v(vt0), v(vl)))
    a("v_add_u32 %s, %s, %s" % (v(vd), v(vd), v(vt0)))
    a("v_lshlrev_b32 %s, 7, %s" % (v(vd), v(vd)))
    a("v_bfe_u32 %s, %s, 3, 1" % (v(vt0), v(vl)))
    a("v_xor_b32 %s, %s, %s" % (v(vt0), rb_src, v(vt0)))
    a("v_lshl_add_u32 %s, %s, 6, %s" % (v(vd), v(vt0), v(vd)))
    a("v_bfe_u32 %s, %s, 4, 1" % (v(vt0), v(vl)))
    a("v_lshl_add_u32 %s, %s, 5, %s" % (v(vd), v(vt0), v(vd)))
    a("v_bfe_u32 %s, %s, 1, 1" % (v(vt0), v(vl)))
    a("v_lshl_add_u32 %s, %s, 4, %s" % (v(vd), v(vt0), v(vd)))
    a("v_and_b32 %s, 1, %s" % (v(vt0), v(vl)))
    a("v_lshl_add_u32 %s, %s, 3, %s" % (v(vd), v(vt0), v(vd)))
    if base_imm:
        a("v_add_u32 %s, 0x%x, %s" % (v(vd), base_imm, v(vd)))


def emit_kc_addr(a, vd4, vl, vt0, vt1, base_imm=0):
    a("v_bfe_u32 %s, %s, 1, 3" % (v(vt0), v(vl)))
    a("v_lshrrev_b32 %s, 5, %s" % (v(vt1), v(vl)))
    a("v_xor_b32 %s, %s, %s" % (v(vt0), v(vt0), v(vt1)))
    a("v_and_b32 %s, 31, %s" % (v(vt1), v(vl)))
    a("v_lshlrev_b32 %s, 7, %s" % (v(vt1), v(vt1)))
    if base_imm:
        a("v_add_u32 %s, 0x%x, %s" % (v(vt1), base_imm, v(vt1)))
    for kk in range(4):
        a("v_xor_b32 %s, %d, %s" % (v(vd4 + kk), 2 * kk, v(vt0)))
        a("v_lshl_add_u32 %s, %s, 4, %s" % (v(vd4 + kk), v(vd4 + kk), v(vt1)))


def emit_dma_off_tr(a, vd, vl, vt0, rowstride, sTmp):
    a("v_bfe_u32 %s, %s, 4, 1" % (v(vt0), v(vl)))
    a("v_lshlrev_b32 %s, 2, %s" % (v(vt0), v(vt0)))
    a("v_and_b32 %s, 7, %s" % (v(vd), v(vl)))
    a("v_xor_b32 %s, %s, %s" % (v(vd), v(vd), v(vt0)))
    a("v_lshlrev_b32 %s, 4, %s" % (v(vd), v(vd)))
    a("v_lshrrev_b32 %s, 3, %s" % (v(vt0), v(vl)))
    a("s_mov_b32 %s, %d" % (s(sTmp), rowstride))
    a("v_mul_lo_u32 %s, %s, %s" % (v(vt0), v(vt0), s(sTmp)))
    a("v_add_u32 %s, %s, %s" % (v(vd), v(vd), v(vt0)))


def emit_dma_chunk_kc(a, vd, vl, vt0, sW):
    a("s_and_b32 %s, %s, 1" % (s(sW + 1), s(sW)))
    a("s_lshl_b32 %s, %s, 2" % (s(sW + 1), s(sW + 1)))
    a("v_lshrrev_b32 %s, 4, %s" % (v(vt0), v(vl)))
    a("v_add_u32 %s, %s, %s" % (v(vt0), s(sW + 1), v(vt0)))
    a("v_and_b32 %s, 7, %s" % (v(vd), v(vl)))
    a("v_xor_b32 %s, %s, %s" % (v(vd), v(vd), v(vt0)))
    a("v_lshlrev_b32 %s, 4, %s" % (v(vd), v(vd)))


def wave_reduce_add(a, regs, tmps):
    n = len(regs)
    pad = "s_nop %d" % max(0, 2 - n) if n < 3 else None

    def gap():
        if n < 3:
            a("s_nop 1")

    for mode in ("quad_perm:[1,0,3,2]", "quad_perm:[2,3,0,1]", "row_half_mirror", "row_mirror"):
        for r, t in zip(regs, tmps):
            a("v_add_f32_dpp %s, %s, %s %s row_mask:0xf bank_mask:0xf" % (v(t), v(r), v(r), mode))
        gap()
        regs, tmps = tmps, regs
    for op in ("v_permlane16_swap_b32", "v_permlane32_swap_b32"):
        for r, t in zip(regs, tmps):
            a("v_mov_b32 %s, %s" % (v(t), v(r)))
        a("s_nop 1")
        for r, t in zip(regs, tmps):
            a("%s %s, %s" % (op, v(t), v(r)))
        a("s_nop 1")
        for r, t in zip(regs, tmps):
            a("v_add_f32 %s, %s, %s" % (v(r), v(r), v(t)))
        gap()
    return regs


def ring_advance(a, sRS, sD, slot, total):
    a("s_add_u32 %s, %s, %d" % (s(sD), s(sRS), slot))
    a("s_cmp_eq_u32 %s, %d" % (s(sD), total))
    a("s_cselect_b32 %s, 0, %s" % (s(sD), s(sD)))
    a("s_xor_b32 %s, %s, %s" % (s(sD), s(sD), s(sRS)))
    a("s_xor_b32 %s, %s, %s" % (s(sRS), s(sRS), s(sD)))
    a("s_xor_b32 %s, %s, %s" % (s(sD), s(sD), s(sRS)))
    a("s_sub_u32 %s, %s, %s" % (s(sD), s(sRS), s(sD)))


def bf16_round(a, vd, vs):
    a("v_cvt_pk_bf16_f32 %s, %s, %s" % (v(vd), v(vs), v(vs)))
    a("v_lshlrev_b32 %s, 16, %s" % (v(vd), v(vd)))


K1_SLOT = 36864
K1_NS = 4
K1_LDS = K1_SLOT * K1_NS
QRS = 400


def gen_k1(a):
    name = "k1_kernel"
    kernel_head(a, name)
    S = RegAlloc(3, 100)
    V = RegAlloc(1, 256)
    a("s_cmp_ge_u32 s2, 256")
    a("s_cbranch_scc1 K1_END")
    sP = S.alloc(8, 4)
    a("s_load_dwordx4 %s, s[0:1], 0" % s(sP, 4))
    a("s_load_dwordx2 %s, s[0:1], 64" % s(sP + 4, 2))
    a("s_load_dwordx2 %s, s[0:1], 88" % s(sP + 6, 2))
    vL = V.alloc()
    vT0, vT1 = V.alloc(), V.alloc()
    sW = S.alloc(2)
    a("v_lshrrev_b32 %s, 6, v0" % v(vT0))
    a("v_and_b32 %s, 63, v0" % v(vL))
    a("v_readfirstlane_b32 %s, %s" % (s(sW), v(vT0)))
    sT0, sHq, sTmp, sTmp2 = S.alloc(), S.alloc(), S.alloc(), S.alloc()
    a("s_and_b32 %s, s2, 3" % s(sT0))
    a("s_lshl_b32 %s, %s, 3" % (s(sT0), s(sT0)))
    a("s_bfe_u32 %s, s2, 0x30003" % s(sTmp))
    a("s_add_u32 %s, %s, %s" % (s(sT0), s(sT0), s(sTmp)))
    a("s_lshl_b32 %s, %s, 6" % (s(sT0), s(sT0)))
    a("s_bfe_u32 %s, s2, 0x10002" % s(sHq))
    a("s_lshl_b32 %s, %s, 2" % (s(sHq), s(sHq)))
    a("s_lshr_b32 %s, s2, 6" % s(sTmp))
    a("s_add_u32 %s, %s, %s" % (s(sHq), s(sHq), s(sTmp)))
    sX, sWq, sH, sO, sG, sGW = [S.alloc(4, 4) for _ in range(6)]
    a("s_waitcnt lgkmcnt(0)")
    make_srd(a, sX, sP, 2048 * 1024)
    make_srd(a, sWq, sP + 2, 512 * 3072)
    make_srd(a, sGW, sP + 4, 1024)
    make_srd(a, sH, sP + 6, 2048 * 1024, WS_H)
    make_srd(a, sO, sP + 6, 2048 * 1024, WS_O)
    make_srd(a, sG, sP + 6, 8192, WS_G)

    sRow = S.alloc()
    a("s_lshl_b32 %s, %s, 3" % (s(sRow), s(sHq)))
    a("s_add_u32 %s, %s, %s" % (s(sRow), s(sRow), s(sT0)))
    a("s_lshl_b32 %s, %s, 1" % (s(sTmp), s(sW)))
    a("s_add_u32 %s, %s, %s" % (s(sRow), s(sRow), s(sTmp)))
    sRowB = S.alloc()
    a("s_lshl_b32 %s, %s, 10" % (s(sRowB), s(sRow)))
    vL16 = V.alloc()
    a("v_lshlrev_b32 %s, 4, %s" % (v(vL16), v(vL)))
    vXr = V.alloc(8, 4)
    vGW = V.alloc(4, 4)
    a("buffer_load_dwordx4 %s, %s, %s, %s offen" % (v(vXr, 4), v(vL16), s(sX, 4), s(sRowB)))
    a("buffer_load_dwordx4 %s, %s, %s, %s offen offset:1024" % (v(vXr + 4, 4), v(vL16), s(sX, 4), s(sRowB)))
    a("buffer_load_dwordx4 %s, %s, %s, 0 offen" % (v(vGW, 4), v(vL16), s(sGW, 4)))

    vOx, vOxh, vOw = V.alloc(), V.alloc(), V.alloc()
    emit_dma_chunk_kc(a, vOx, vL, vT0, sW)
    a("v_lshrrev_b32 %s, 3, %s" % (v(vT0), v(vL)))
    a("s_lshl_b32 %s, %s, 3" % (s(sTmp), s(sW)))
    a("s_add_u32 %s, %s, %s" % (s(sTmp), s(sTmp), s(sT0)))
    a("s_sub_u32 %s, %s, 32" % (s(sTmp), s(sTmp)))
    a("v_add_u32 %s, %s, %s" % (v(vT1), s(sTmp), v(vT0)))
    a("v_max_i32 %s, 0, %s" % (v(vT1), v(vT1)))
    a("v_lshl_add_u32 %s, %s, 10, %s" % (v(vOxh), v(vT1), v(vOx)))
    a("v_lshl_add_u32 %s, %s, 10, %s" % (v(vOx), v(vT0), v(vOx)))
    emit_dma_off_tr(a, vOw, vL, vT0, 3072, sTmp2)
    sXr1, sWr0, sW1k = S.alloc(), S.alloc(), S.alloc()
    a("s_add_u32 %s, %s, 32" % (s(sXr1), s(sTmp)))
    a("s_lshl_b32 %s, %s, 10" % (s(sXr1), s(sXr1)))
    a("s_mul_i32 %s, %s, %d" % (s(sWr0), s(sW), 8 * 3072))
    a("s_lshl_b32 %s, %s, 7" % (s(sTmp), s(sHq)))
    a("s_add_u32 %s, %s, %s" % (s(sWr0), s(sWr0), s(sTmp)))
    a("s_lshl_b32 %s, %s, 10" % (s(sW1k), s(sW)))
    sJ, sXk, sWk, sWS = S.alloc(), S.alloc(), S.alloc(), S.alloc()
    a("s_mov_b32 %s, 0" % s(sJ))
    a("s_mov_b32 %s, 0" % s(sWS))

    def issue_stage():
        a("s_lshl_b32 %s, %s, 7" % (s(sXk), s(sJ)))
        a("s_cmp_lt_u32 %s, 8" % s(sJ))
        a("s_cselect_b32 %s, %s, 0x40000000" % (s(sXk), s(sXk)))
        a("s_mul_i32 %s, %s, %d" % (s(sWk), s(sJ), 64 * 3072))
        a("s_add_u32 %s, %s, %s" % (s(sWk), s(sWk), s(sWr0)))
        a("s_add_u32 m0, %s, %s" % (s(sWS), s(sW1k)))
        a("s_add_u32 %s, %s, %s" % (s(sTmp), s(sXr1), s(sXk)))
        a("buffer_load_dwordx4 %s, %s, %s offen lds" % (v(vOxh), s(sX, 4), s(sXk)))
        a("s_add_u32 m0, m0, 4096")
        a("s_add_u32 %s, %s, %d" % (s(sTmp2), s(sTmp), 32 * 1024))
        a("buffer_load_dwordx4 %s, %s, %s offen lds" % (v(vOx), s(sX, 4), s(sTmp)))
        a("s_add_u32 m0, m0, 4096")
        a("s_nop 0")
        a("buffer_load_dwordx4 %s, %s, %s offen lds" % (v(vOx), s(sX, 4), s(sTmp2)))
        for p in range(3):
            for half in range(2):
                a("s_add_u32 m0, m0, 4096")
                a("s_add_u32 %s, %s, %d" % (s(sTmp), s(sWk), p * 1024 + half * 32 * 3072))
                a("buffer_load_dwordx4 %s, %s, %s offen lds" % (v(vOw), s(sWq, 4), s(sTmp)))
        a("s_add_u32 %s, %s, 1" % (s(sJ), s(sJ)))
        a("s_add_u32 %s, %s, %d" % (s(sWS), s(sWS), K1_SLOT))
        a("s_cmp_eq_u32 %s, %d" % (s(sWS), K1_LDS))
        a("s_cselect_b32 %s, 0, %s" % (s(sWS), s(sWS)))

    for _ in range(K1_NS - 1):
        issue_stage()

    vA0, vA1 = V.alloc(), V.alloc()
    vC = V.alloc(4)
    vCq = V.alloc(4)
    a("s_and_b32 %s, %s, 1" % (s(sTmp), s(sW)))
    emit_tr_addr(a, vA0, vL, vT0, vT1, s(sTmp))
    a("s_lshr_b32 %s, %s, 1" % (s(sTmp2), s(sW)))
    emit_tr_addr(a, vA1, vL, vT0, vT1, s(sTmp2), 12288)
    a("s_lshl_b32 %s, %s, 13" % (s(sTmp2), s(sTmp2)))
    a("s_add_u32 %s, %s, %d" % (s(sTmp2), s(sTmp2), 12288 + 8192))
    a("v_add_u32 %s, %s, %s" % (v(vA0), s(sTmp2), v(vA0)))
    emit_kc_addr(a, vC, vL, vT0, vT1)
    a("s_lshl_b32 %s, %s, 12" % (s(sTmp), s(sTmp)))
    a("s_add_u32 %s, %s, 4096" % (s(sTmp), s(sTmp)))
    for kk in range(4):
        a("v_add_u32 %s, %s, %s" % (v(vCq + kk), s(sTmp), v(vC + kk)))

    vAcc = V.alloc(64, 4)
    for i in range(64):
        a("v_mov_b32 %s, 0" % v(vAcc + i))
    vF = [V.alloc(24, 4), V.alloc(24, 4)]

    m = V.mark()
    vx = [V.alloc(8), V.alloc(8)]
    vg = V.alloc(8)
    vs1 = [V.alloc(), V.alloc()]
    vs3 = [V.alloc(), V.alloc()]
    vt = [V.alloc() for _ in range(4)]
    vp = V.alloc(8)
    a("s_waitcnt vmcnt(%d)" % (9 * (K1_NS - 1)))
    for i in range(4):
        a("v_lshlrev_b32 %s, 16, %s" % (v(vg + 2 * i), v(vGW + i)))
        a("v_and_b32 %s, 0xffff0000, %s" % (v(vg + 2 * i + 1), v(vGW + i)))
    for r in range(2):
        for i in range(4):
            a("v_lshlrev_b32 %s, 16, %s" % (v(vx[r] + 2 * i), v(vXr + 4 * r + i)))
            a("v_and_b32 %s, 0xffff0000, %s" % (v(vx[r] + 2 * i + 1), v(vXr + 4 * r + i)))
        a("v_add_f32 %s, %s, %s" % (v(vs1[r]), v(vx[r]), v(vx[r] + 1)))
        for i in range(2, 8):
            a("v_add_f32 %s, %s, %s" % (v(vs1[r]), v(vs1[r]), v(vx[r] + i)))
        for i in range(8):
            a("v_mul_f32 %s, %s, %s" % (v(vp + i), v(vx[r] + i), v(vg + i)))
        for i in range(4):
            a("v_cvt_pk_bf16_f32 %s, %s, %s" % (v(vp + 2 * i), v(vp + 2 * i), v(vp + 2 * i + 1)))
        for i in range(4):
            a("v_and_b32 %s, 0xffff0000, %s" % (v(vp + 2 * i + 1), v(vp + 2 * i)))
            a("v_lshlrev_b32 %s, 16, %s" % (v(vp + 2 * i), v(vp + 2 * i)))
        a("v_add_f32 %s, %s, %s" % (v(vs3[r]), v(vp), v(vp + 1)))
        for i in range(2, 8):
            a("v_add_f32 %s, %s, %s" % (v(vs3[r]), v(vs3[r]), v(vp + i)))
    a("s_nop 1")
    res = wave_reduce_add(a, [vs1[0], vs1[1], vs3[0], vs3[1]], vt)
    vmean = [res[0], res[1]]
    vgs = [res[2], res[3]]
    vfree = [x for x in (vs1 + vs3 + vt) if x not in res]
    vs2 = [vfree[0], vfree[1]]
    for r in range(2):
        a("v_mul_f32 %s, 0x3b000000, %s" % (v(vmean[r]), v(vmean[r])))
    for r in range(2):
        for i in range(8):
            a("v_sub_f32 %s, %s, %s" % (v(vp + i), v(vx[r] + i), v(vmean[r])))
        a("v_mul_f32 %s, %s, %s" % (v(vs2[r]), v(vp), v(vp)))
        for i in range(1, 8):
            a("v_fmac_f32 %s, %s, %s" % (v(vs2[r]), v(vp + i), v(vp + i)))
    a("s_nop 1")
    res2 = wave_reduce_add(a, vs2, [vfree[2], vfree[3]])
    vvar = res2
    vtmpa = [x for x in vfree if x not in res2]
    for r in range(2):
        a("v_mul_f32 %s, 0x3b000000, %s" % (v(vvar[r]), v(vvar[r])))
        bf16_round(a, vvar[r], vvar[r])
        a("v_add_f32 %s, 0x3727c5ac, %s" % (v(vvar[r]), v(vvar[r])))
        bf16_round(a, vvar[r], vvar[r])
        a("v_sqrt_f32 %s, %s" % (v(vvar[r]), v(vvar[r])))
        a("s_nop 0")
        bf16_round(a, vvar[r], vvar[r])
        a("v_rcp_f32 %s, %s" % (v(vvar[r]), v(vvar[r])))
        bf16_round(a, vmean[r], vmean[r])
        for i in range(8):
            a("v_sub_f32 %s, %s, %s" % (v(vp + i), v(vx[r] + i), v(vmean[r])))
        for i in range(4):
            a("v_cvt_pk_bf16_f32 %s, %s, %s" % (v(vp + 2 * i), v(vp + 2 * i), v(vp + 2 * i + 1)))
        for i in range(4):
            a("v_and_b32 %s, 0xffff0000, %s" % (v(vp + 2 * i + 1), v(vp + 2 * i)))
            a("v_lshlrev_b32 %s, 16, %s" % (v(vp + 2 * i), v(vp + 2 * i)))
        for i in range(8):
            a("v_mul_f32 %s, %s, %s" % (v(vp + i), v(vp + i), v(vvar[r])))
        for i in range(4):
            a("v_cvt_pk_bf16_f32 %s, %s, %s" % (v(vXr + 4 * r + i), v(vp + 2 * i), v(vp + 2 * i + 1)))
        a("buffer_store_dwordx4 %s, %s, %s, %s offen offset:%d" % (v(vXr + 4 * r, 4), v(vL16), s(sH, 4), s(sRowB), 1024 * r))
    for r in range(2):
        bf16_round(a, vgs[r], vgs[r])
        a("v_mul_f32 %s, 0xbfb8aa3b, %s" % (v(vgs[r]), v(vgs[r])))
        a("v_exp_f32 %s, %s" % (v(vgs[r]), v(vgs[r])))
        a("s_nop 0")
        a("v_add_f32 %s, 1.0, %s" % (v(vgs[r]), v(vgs[r])))
        a("v_rcp_f32 %s, %s" % (v(vgs[r]), v(vgs[r])))
        a("s_nop 0")
        bf16_round(a, vgs[r], vgs[r])
    a("v_mov_b32 %s, %s" % (v(vp), v(vgs[0])))
    a("v_mov_b32 %s, %s" % (v(vp + 1), v(vgs[1])))
    a("v_mov_b32 %s, 0" % v(vp + 2))
    a("s_lshl_b32 %s, %s, 2" % (s(sTmp), s(sRow)))
    sEx = S.alloc(2, 2)
    a("s_mov_b64 %s, exec" % s(sEx, 2))
    a("s_mov_b64 exec, 1")
    assert vp % 2 == 0
    a("buffer_store_dwordx2 %s, %s, %s, %s offen" % (v(vp, 2), v(vp + 2), s(sG, 4), s(sTmp)))
    a("s_mov_b64 exec, %s" % s(sEx, 2))
    V.release(m)

    def read_frags(fs, kk):
        b = vF[fs]
        a("ds_read_b64_tr_b16 %s, %s offset:%d" % (v(b, 2), v(vA0), kk * 2048))
        a("ds_read_b64_tr_b16 %s, %s offset:%d" % (v(b + 2, 2), v(vA0), kk * 2048 + 512))
        a("ds_read_b128 %s, %s" % (v(b + 8, 4), v(vC + kk)))
        a("ds_read_b128 %s, %s offset:4096" % (v(b + 12, 4), v(vC + kk)))
        a("ds_read_b128 %s, %s offset:8192" % (v(b + 16, 4), v(vC + kk)))
        a("ds_read_b64_tr_b16 %s, %s offset:%d" % (v(b + 4, 2), v(vA1), kk * 2048))
        a("ds_read_b64_tr_b16 %s, %s offset:%d" % (v(b + 6, 2), v(vA1), kk * 2048 + 512))
        a("ds_read_b128 %s, %s" % (v(b + 20, 4), v(vCq + kk)))

    sRS, sD, sI = S.alloc(), S.alloc(), S.alloc()
    a("s_mov_b32 %s, 0" % s(sRS))
    a("s_mov_b32 %s, 0" % s(sI))
    a("s_waitcnt vmcnt(%d)" % (9 * (K1_NS - 2) + 3))
    a("s_barrier")
    read_frags(0, 0)
    a.label("K1_LOOP")
    a("s_waitcnt vmcnt(%d)" % (9 * (K1_NS - 3)))
    a("s_barrier")
    issue_stage()
    for kk in range(4):
        a("s_waitcnt lgkmcnt(0)")
        if kk == 3:
            ring_advance(a, sRS, sD, K1_SLOT, K1_LDS)
            for r in [vA0, vA1] + [vC + i for i in range(4)] + [vCq + i for i in range(4)]:
                a("v_add_u32 %s, %s, %s" % (v(r), s(sD), v(r)))
        read_frags((kk + 1) & 1, (kk + 1) & 3)
        b = vF[kk & 1]
        for t in range(3):
            a("v_mfma_f32_32x32x16_bf16 %s, %s, %s, %s" % (v(vAcc + 16 * t, 16), v(b, 4), v(b + 8 + 4 * t, 4), v(vAcc + 16 * t, 16)))
        a("v_mfma_f32_32x32x16_bf16 %s, %s, %s, %s" % (v(vAcc + 48, 16), v(b + 4, 4), v(b + 20, 4), v(vAcc + 48, 16)))
    a("s_add_u32 %s, %s, 1" % (s(sI), s(sI)))
    a("s_cmp_lt_u32 %s, 8" % s(sI))
    a("s_cbranch_scc1 K1_LOOP")
    a("s_waitcnt vmcnt(0) lgkmcnt(0)")
    a("s_barrier")

    vWa, vWq = vA0, vA1
    a("v_and_b32 %s, 31, %s" % (v(vT0), v(vL)))
    a("v_mul_u32_u24 %s, %d, %s" % (v(vT0), QRS, v(vT0)))
    a("v_lshrrev_b32 %s, 5, %s" % (v(vT1), v(vL)))
    a("v_lshl_add_u32 %s, %s, 3, %s" % (v(vT0), v(vT1), v(vT0)))
    a("s_lshr_b32 %s, %s, 1" % (s(sTmp), s(sW)))
    a("s_and_b32 %s, %s, 1" % (s(sTmp2), s(sW)))
    a("s_lshl_b32 %s, %s, 7" % (s(sD), s(sTmp)))
    a("s_lshl_b32 %s, %s, 6" % (s(sRS), s(sTmp2)))
    a("s_add_u32 %s, %s, %s" % (s(sD), s(sD), s(sRS)))
    a("s_add_u32 %s, %s, 128" % (s(sD), s(sD)))
    a("v_add_u32 %s, %s, %s" % (v(vWa), s(sD), v(vT0)))
    a("s_lshl_b32 %s, %s, 6" % (s(sD), s(sTmp)))
    a("s_mul_i32 %s, %s, %d" % (s(sRS), s(sTmp2), 32 * QRS))
    a("s_add_u32 %s, %s, %s" % (s(sD), s(sD), s(sRS)))
    a("s_add_u32 %s, %s, %d" % (s(sD), s(sD), 32 * QRS))
    a("v_add_u32 %s, %s, %s" % (v(vWq), s(sD), v(vT0)))
    a("s_nop 7")
    pk = vF[0]
    n = 0
    for t in range(4):
        for g in range(4):
            r0 = vAcc + 16 * t + 4 * g
            d = pk + 2 * (n % 8)
            a("v_cvt_pk_bf16_f32 %s, %s, %s" % (v(d), v(r0), v(r0 + 1)))
            a("v_cvt_pk_bf16_f32 %s, %s, %s" % (v(d + 1), v(r0 + 2), v(r0 + 3)))
            if t < 3:
                a("ds_write_b64 %s, %s offset:%d" % (v(vWa), v(d, 2), t * 32 * QRS + g * 16))
            else:
                a("ds_write_b64 %s, %s offset:%d" % (v(vWq), v(d, 2), g * 16))
            n += 1
    a("s_waitcnt lgkmcnt(0)")
    a("s_barrier")

    V.release(vAcc)
    vQ = V.alloc(8, 4)
    vK = V.alloc(64, 4)
    vV = V.alloc(64, 4)
    vB = V.alloc()
    vTok = V.alloc()
    a("v_lshrrev_b32 %s, 2, %s" % (v(vTok), v(vL)))
    a("s_lshl_b32 %s, %s, 4" % (s(sTmp), s(sW)))
    a("v_add_u32 %s, %s, %s" % (v(vTok), s(sTmp), v(vTok)))
    a("v_add_u32 %s, 18, %s" % (v(vB), v(vTok)))
    a("v_mul_u32_u24 %s, %d, %s" % (v(vB), QRS, v(vB)))
    a("v_and_b32 %s, 3, %s" % (v(vT0), v(vL)))
    a("v_lshl_add_u32 %s, %s, 5, %s" % (v(vB), v(vT0), v(vB)))
    a("ds_read_b128 %s, %s offset:%d" % (v(vQ, 4), v(vB), 7 * 2 * QRS))
    a("ds_read_b128 %s, %s offset:%d" % (v(vQ + 4, 4), v(vB), 7 * 2 * QRS + 16))
    for j in range(8):
        a("ds_read_b128 %s, %s offset:%d" % (v(vK + 8 * j, 4), v(vB), (7 - j) * 2 * QRS + 128))
        a("ds_read_b128 %s, %s offset:%d" % (v(vK + 8 * j + 4, 4), v(vB), (7 - j) * 2 * QRS + 144))
    vLg = V.alloc(8)
    vS = V.alloc()
    a("v_add_u32 %s, %s, %s" % (v(vS), s(sT0), v(vTok)))
    sM = S.alloc(16, 2)
    for j in range(1, 8):
        a("v_cmp_le_u32 %s, %d, %s" % (s(sM + 2 * j, 2), 2 * j, v(vS)))
    a("s_waitcnt lgkmcnt(0)")
    for j in range(8):
        a("ds_read_b128 %s, %s offset:%d" % (v(vV + 8 * j, 4), v(vB), (7 - j) * 2 * QRS + 256))
        a("ds_read_b128 %s, %s offset:%d" % (v(vV + 8 * j + 4, 4), v(vB), (7 - j) * 2 * QRS + 272))
    for j in range(8):
        a("v_dot2_f32_bf16 %s, %s, %s, 0" % (v(vLg + j), v(vQ), v(vK + 8 * j)))
    for i in range(1, 8):
        for j in range(8):
            a("v_dot2_f32_bf16 %s, %s, %s, %s" % (v(vLg + j), v(vQ + i), v(vK + 8 * j + i), v(vLg + j)))
    a("s_nop 2")
    vPk = V.alloc(4)
    for i in range(4):
        a("v_cvt_pk_bf16_f32 %s, %s, %s" % (v(vPk + i), v(vLg + 2 * i), v(vLg + 2 * i + 1)))
    for i in range(4):
        a("v_lshlrev_b32 %s, 16, %s" % (v(vLg + 2 * i), v(vPk + i)))
        a("v_and_b32 %s, 0xffff0000, %s" % (v(vLg + 2 * i + 1), v(vPk + i)))
    a("v_mov_b32 %s, 0xf149f2ca" % v(vT0))
    for j in range(1, 8):
        a("v_cndmask_b32 %s, %s, %s, %s" % (v(vLg + j), v(vT0), v(vLg + j), s(sM + 2 * j, 2)))
    vMx = V.alloc()
    a("v_max3_f32 %s, %s, %s, %s" % (v(vMx), v(vLg), v(vLg + 1), v(vLg + 2)))
    a("v_max3_f32 %s, %s, %s, %s" % (v(vMx), v(vMx), v(vLg + 3), v(vLg + 4)))
    a("v_max3_f32 %s, %s, %s, %s" % (v(vMx), v(vMx), v(vLg + 5), v(vLg + 6)))
    a("v_max_f32 %s, %s, %s" % (v(vMx), v(vMx), v(vLg + 7)))
    for j in range(8):
        a("v_sub_f32 %s, %s, %s" % (v(vLg + j), v(vLg + j), v(vMx)))
    for j in range(8):
        a("v_mul_f32 %s, 0x3eb8aa3b, %s" % (v(vLg + j), v(vLg + j)))
    for j in range(8):
        a("v_exp_f32 %s, %s" % (v(vLg + j), v(vLg + j)))
    a("s_nop 0")
    a("v_add_f32 %s, %s, %s" % (v(vMx), v(vLg), v(vLg + 1)))
    for j in range(2, 8):
        a("v_add_f32 %s, %s, %s" % (v(vMx), v(vMx), v(vLg + j)))
    a("v_rcp_f32 %s, %s" % (v(vMx), v(vMx)))
    a("s_nop 0")
    for j in range(8):
        a("v_mul_f32 %s, %s, %s" % (v(vLg + j), v(vLg + j), v(vMx)))
    for i in range(4):
        a("v_cvt_pk_bf16_f32 %s, %s, %s" % (v(vPk + i), v(vLg + 2 * i), v(vLg + 2 * i + 1)))
    sSelLo, sSelHi = S.alloc(), S.alloc()
    a("s_mov_b32 %s, 0x05040100" % s(sSelLo))
    a("s_mov_b32 %s, 0x07060302" % s(sSelHi))
    vO = V.alloc(16)
    vPr = V.alloc(16)
    a("s_waitcnt lgkmcnt(0)")
    for i in range(4):
        for mreg in range(8):
            a("v_perm_b32 %s, %s, %s, %s" % (v(vPr + 2 * mreg), v(vV + 8 * (2 * i + 1) + mreg), v(vV + 8 * (2 * i) + mreg), s(sSelLo)))
            a("v_perm_b32 %s, %s, %s, %s" % (v(vPr + 2 * mreg + 1), v(vV + 8 * (2 * i + 1) + mreg), v(vV + 8 * (2 * i) + mreg), s(sSelHi)))
        for e in range(16):
            a("v_dot2_f32_bf16 %s, %s, %s, %s" % (v(vO + e), v(vPr + e), v(vPk + i), "0" if i == 0 else v(vO + e)))
    a("s_nop 2")
    vOut = vQ
    for i in range(8):
        a("v_cvt_pk_bf16_f32 %s, %s, %s" % (v(vOut + i), v(vO + 2 * i), v(vO + 2 * i + 1)))
    a("v_lshlrev_b32 %s, 10, %s" % (v(vS), v(vS)))
    a("v_and_b32 %s, 3, %s" % (v(vT0), v(vL)))
    a("v_lshl_add_u32 %s, %s, 5, %s" % (v(vS), v(vT0), v(vS)))
    a("s_lshl_b32 %s, %s, 7" % (s(sTmp), s(sHq)))
    a("buffer_store_dwordx4 %s, %s, %s, %s offen" % (v(vOut, 4), v(vS), s(sO, 4), s(sTmp)))
    a("buffer_store_dwordx4 %s, %s, %s, %s offen offset:16" % (v(vOut + 4, 4), v(vS), s(sO, 4), s(sTmp)))
    a.label("K1_END")
    a("s_endpgm")
    return name, V.high, S.high


G_SLOT = 16384
G_NS = 9
G_LDS = G_SLOT * G_NS


def gen_k2(a):
    name = "k2_kernel"
    kernel_head(a, name)
    S = RegAlloc(3, 100)
    V = RegAlloc(1, 256)
    a("s_cmp_ge_u32 s2, 224")
    a("s_cbranch_scc1 K2_END")
    sP = S.alloc(8, 4)
    a("s_load_dwordx4 %s, s[0:1], 32" % s(sP, 4))
    a("s_load_dwordx2 %s, s[0:1], 88" % s(sP + 4, 2))
    vL = V.alloc()
    vT0, vT1 = V.alloc(), V.alloc()
    sW = S.alloc(2)
    a("v_lshrrev_b32 %s, 6, v0" % v(vT0))
    a("v_and_b32 %s, 63, v0" % v(vL))
    a("v_readfirstlane_b32 %s, %s" % (s(sW), v(vT0)))
    sDt, sFt, sTmp, sTmp2 = S.alloc(), S.alloc(), S.alloc(), S.alloc()
    a("s_and_b32 %s, s2, 1" % s(sDt))
    a("s_lshl_b32 %s, %s, 2" % (s(sDt), s(sDt)))
    a("s_bfe_u32 %s, s2, 0x20003" % s(sTmp))
    a("s_add_u32 %s, %s, %s" % (s(sDt), s(sDt), s(sTmp)))
    a("s_bfe_u32 %s, s2, 0x20001" % s(sFt))
    a("s_mul_i32 %s, %s, 7" % (s(sFt), s(sFt)))
    a("s_lshr_b32 %s, s2, 5" % s(sTmp))
    a("s_add_u32 %s, %s, %s" % (s(sFt), s(sFt), s(sTmp)))
    sW1, sB1, sH, sU = [S.alloc(4, 4) for _ in range(4)]
    a("s_waitcnt lgkmcnt(0)")
    make_srd(a, sW1, sP, 2048 * 3584)
    make_srd(a, sB1, sP + 2, 3584)
    make_srd(a, sH, sP + 4, 2048 * 1024, WS_H)
    make_srd(a, sU, sP + 4, 512 * 3584, WS_U)
    vOr, vOc = V.alloc(), V.alloc()
    emit_dma_off_tr(a, vOr, vL, vT0, 3584, sTmp)
    emit_dma_off_tr(a, vOc, vL, vT0, 1024, sTmp)
    sRk, sCk, sW1k, sWS = S.alloc(), S.alloc(), S.alloc(), S.alloc()
    a("s_mul_i32 %s, %s, %d" % (s(sRk), s(sW), 8 * 3584))
    a("s_lshl_b32 %s, %s, 7" % (s(sTmp), s(sFt)))
    a("s_add_u32 %s, %s, %s" % (s(sRk), s(sRk), s(sTmp)))
    a("s_lshl_b32 %s, %s, 13" % (s(sCk), s(sW)))
    a("s_lshl_b32 %s, %s, 7" % (s(sTmp), s(sDt)))
    a("s_add_u32 %s, %s, %s" % (s(sCk), s(sCk), s(sTmp)))
    a("s_lshl_b32 %s, %s, 10" % (s(sW1k), s(sW)))
    a("s_mov_b32 %s, 0" % s(sWS))

    def issue_stage():
        a("s_add_u32 m0, %s, %s" % (s(sWS), s(sW1k)))
        a("s_add_u32 %s, %s, %d" % (s(sTmp), s(sRk), 32 * 3584))
        a("buffer_load_dwordx4 %s, %s, %s offen lds" % (v(vOr), s(sW1, 4), s(sRk)))
        a("s_add_u32 m0, m0, 4096")
        a("s_add_u32 %s, %s, %d" % (s(sTmp2), s(sCk), 32 * 1024))
        a("buffer_load_dwordx4 %s, %s, %s offen lds" % (v(vOr), s(sW1, 4), s(sTmp)))
        a("s_add_u32 m0, m0, 4096")
        a("s_add_u32 %s, %s, %d" % (s(sRk), s(sRk), 64 * 3584))
        a("buffer_load_dwordx4 %s, %s, %s offen lds" % (v(vOc), s(sH, 4), s(sCk)))
        a("s_add_u32 m0, m0, 4096")
        a("s_add_u32 %s, %s, %d" % (s(sCk), s(sCk), 64 * 1024))
        a("buffer_load_dwordx4 %s, %s, %s offen lds" % (v(vOc), s(sH, 4), s(sTmp2)))
        a("s_add_u32 %s, %s, %d" % (s(sWS), s(sWS), G_SLOT))
        a("s_cmp_eq_u32 %s, %d" % (s(sWS), G_LDS))
        a("s_cselect_b32 %s, 0, %s" % (s(sWS), s(sWS)))

    for _ in range(G_NS - 1):
        issue_stage()
    vR, vCc = V.alloc(), V.alloc()
    a("s_and_b32 %s, %s, 1" % (s(sTmp), s(sW)))
    emit_tr_addr(a, vR, vL, vT0, vT1, s(sTmp))
    a("s_lshr_b32 %s, %s, 1" % (s(sTmp2), s(sW)))
    emit_tr_addr(a, vCc, vL, vT0, vT1, s(sTmp2), 8192)
    vBo = V.alloc()
    vB1 = V.alloc(8, 2)
    a("v_lshrrev_b32 %s, 5, %s" % (v(vBo), v(vL)))
    a("v_lshlrev_b32 %s, 3, %s" % (v(vBo), v(vBo)))
    sFb = S.alloc()
    a("s_lshl_b32 %s, %s, 7" % (s(sFb), s(sFt)))
    a("s_lshl_b32 %s, %s, 6" % (s(sTmp), s(sTmp)))
    a("s_add_u32 %s, %s, %s" % (s(sFb), s(sFb), s(sTmp)))
    for g in range(4):
        a("buffer_load_dwordx2 %s, %s, %s, %s offen offset:%d" % (v(vB1 + 2 * g, 2), v(vBo), s(sB1, 4), s(sFb), 16 * g))
    vAcc = V.alloc(16, 4)
    for i in range(16):
        a("v_mov_b32 %s, 0" % v(vAcc + i))
    vF = [V.alloc(8, 4), V.alloc(8, 4)]

    def read_frags(fs, kk):
        b = vF[fs]
        a("ds_read_b64_tr_b16 %s, %s offset:%d" % (v(b, 2), v(vR), kk * 2048))
        a("ds_read_b64_tr_b16 %s, %s offset:%d" % (v(b + 4, 2), v(vCc), kk * 2048))
        a("ds_read_b64_tr_b16 %s, %s offset:%d" % (v(b + 2, 2), v(vR), kk * 2048 + 512))
        a("ds_read_b64_tr_b16 %s, %s offset:%d" % (v(b + 6, 2), v(vCc), kk * 2048 + 512))

    sRS, sD, sI = S.alloc(), S.alloc(), S.alloc()
    a("s_mov_b32 %s, 0" % s(sRS))
    a("s_mov_b32 %s, 0" % s(sI))
    a("s_waitcnt vmcnt(%d)" % (4 * (G_NS - 2) + 4))
    a("s_barrier")
    read_frags(0, 0)
    a.label("K2_LOOP")
    a("s_waitcnt vmcnt(%d)" % (4 * (G_NS - 3)))
    a("s_barrier")
    issue_stage()
    for kk in range(4):
        a("s_waitcnt lgkmcnt(0)")
        if kk == 3:
            ring_advance(a, sRS, sD, G_SLOT, G_LDS)
            for r in (vR, vCc):
                a("v_add_u32 %s, %s, %s" % (v(r), s(sD), v(r)))
        read_frags((kk + 1) & 1, (kk + 1) & 3)
        b = vF[kk & 1]
        a("v_mfma_f32_32x32x16_bf16 %s, %s, %s, %s" % (v(vAcc, 16), v(b, 4), v(b + 4, 4), v(vAcc, 16)))
    a("s_add_u32 %s, %s, 1" % (s(sI), s(sI)))
    a("s_cmp_lt_u32 %s, 32" % s(sI))
    a("s_cbranch_scc1 K2_LOOP")
    a("s_waitcnt vmcnt(0) lgkmcnt(0)")
    a("s_nop 7")
    a("s_nop 7")
    vX = V.alloc(16)
    vZ = V.alloc(16)
    for i in range(8):
        a("v_cvt_pk_bf16_f32 %s, %s, %s" % (v(vZ + i), v(vAcc + 2 * i), v(vAcc + 2 * i + 1)))
    for i in range(8):
        a("v_lshlrev_b32 %s, 16, %s" % (v(vX + 2 * i), v(vZ + i)))
        a("v_and_b32 %s, 0xffff0000, %s" % (v(vX + 2 * i + 1), v(vZ + i)))
    for i in range(8):
        a("v_lshlrev_b32 %s, 16, %s" % (v(vZ + 2 * i), v(vB1 + i)))
        a("v_and_b32 %s, 0xffff0000, %s" % (v(vZ + 2 * i + 1), v(vB1 + i)))
    for i in range(16):
        a("v_add_f32 %s, %s, %s" % (v(vX + i), v(vX + i), v(vZ + i)))
    for i in range(8):
        a("v_cvt_pk_bf16_f32 %s, %s, %s" % (v(vZ + i), v(vX + 2 * i), v(vX + 2 * i + 1)))
    for i in range(8):
        a("v_lshlrev_b32 %s, 16, %s" % (v(vX + 2 * i), v(vZ + i)))
        a("v_and_b32 %s, 0xffff0000, %s" % (v(vX + 2 * i + 1), v(vZ + i)))
    import struct
    c1 = struct.unpack("<I", struct.pack("<f", 0.044715))[0]
    c2 = struct.unpack("<I", struct.pack("<f", -2.0 * 0.7978845608028654 * 1.4426950408889634))[0]
    sC1, sC2 = S.alloc(), S.alloc()
    a("s_mov_b32 %s, 0x%x" % (s(sC1), c1))
    a("s_mov_b32 %s, 0x%x" % (s(sC2), c2))
    for i in range(16):
        a("v_mul_f32 %s, %s, %s" % (v(vZ + i), v(vX + i), v(vX + i)))
    for i in range(16):
        a("v_mul_f32 %s, %s, %s" % (v(vZ + i), s(sC1), v(vZ + i)))
    for i in range(16):
        a("v_fma_f32 %s, %s, %s, %s" % (v(vZ + i), v(vZ + i), v(vX + i), v(vX + i)))
    for i in range(16):
        a("v_mul_f32 %s, %s, %s" % (v(vZ + i), s(sC2), v(vZ + i)))
    for i in range(16):
        a("v_exp_f32 %s, %s" % (v(vZ + i), v(vZ + i)))
    a("s_nop 0")
    for i in range(16):
        a("v_add_f32 %s, 1.0, %s" % (v(vZ + i), v(vZ + i)))
    for i in range(16):
        a("v_rcp_f32 %s, %s" % (v(vZ + i), v(vZ + i)))
    a("s_nop 0")
    for i in range(16):
        a("v_mul_f32 %s, %s, %s" % (v(vX + i), v(vX + i), v(vZ + i)))
    vOut = vAcc
    for i in range(8):
        a("v_cvt_pk_bf16_f32 %s, %s, %s" % (v(vOut + i), v(vX + 2 * i), v(vX + 2 * i + 1)))
    a("v_and_b32 %s, 31, %s" % (v(vT0), v(vL)))
    a("s_lshr_b32 %s, %s, 1" % (s(sTmp), s(sW)))
    a("s_lshl_b32 %s, %s, 5" % (s(sTmp), s(sTmp)))
    a("s_lshl_b32 %s, %s, 6" % (s(sTmp2), s(sDt)))
    a("s_add_u32 %s, %s, %s" % (s(sTmp), s(sTmp), s(sTmp2)))
    a("v_add_u32 %s, %s, %s" % (v(vT0), s(sTmp), v(vT0)))
    a("s_movk_i32 %s, 3584" % s(sTmp))
    a("v_mul_lo_u32 %s, %s, %s" % (v(vT0), v(vT0), s(sTmp)))
    a("v_add_u32 %s, %s, %s" % (v(vT0), v(vT0), v(vBo)))
    for g in range(4):
        a("buffer_store_dwordx2 %s, %s, %s, %s offen offset:%d" % (v(vOut + 2 * g, 2), v(vT0), s(sU, 4), s(sFb), 16 * g))
    a.label("K2_END")
    a("s_endpgm")
    return name, V.high, S.high


def gen_k3(a):
    name = "k3_kernel"
    kernel_head(a, name)
    S = RegAlloc(3, 100)
    V = RegAlloc(1, 256)
    a("s_cmp_ge_u32 s2, 256")
    a("s_cbranch_scc1 K3_END")
    sP = S.alloc(12, 4)
    a("s_load_dwordx2 %s, s[0:1], 16" % s(sP, 2))
    a("s_load_dwordx4 %s, s[0:1], 48" % s(sP + 4, 4))
    a("s_load_dwordx2 %s, s[0:1], 72" % s(sP + 8, 2))
    a("s_load_dwordx2 %s, s[0:1], 88" % s(sP + 10, 2))
    vL = V.alloc()
    vT0, vT1 = V.alloc(), V.alloc()
    sW = S.alloc(2)
    a("v_lshrrev_b32 %s, 6, v0" % v(vT0))
    a("v_and_b32 %s, 63, v0" % v(vL))
    a("v_readfirstlane_b32 %s, %s" % (s(sW), v(vT0)))
    sDt, sSt, sTmp, sTmp2 = S.alloc(), S.alloc(), S.alloc(), S.alloc()
    a("s_and_b32 %s, s2, 1" % s(sDt))
    a("s_lshl_b32 %s, %s, 2" % (s(sDt), s(sDt)))
    a("s_bfe_u32 %s, s2, 0x20003" % s(sTmp))
    a("s_add_u32 %s, %s, %s" % (s(sDt), s(sDt), s(sTmp)))
    a("s_bfe_u32 %s, s2, 0x20001" % s(sSt))
    a("s_lshl_b32 %s, %s, 3" % (s(sSt), s(sSt)))
    a("s_lshr_b32 %s, s2, 5" % s(sTmp))
    a("s_add_u32 %s, %s, %s" % (s(sSt), s(sSt), s(sTmp)))
    sWo, sW2, sB2, sOut, sO, sU, sG = [S.alloc(4, 4) for _ in range(7)]
    a("s_waitcnt lgkmcnt(0)")
    make_srd(a, sWo, sP, 512 * 1024)
    make_srd(a, sW2, sP + 4, 1792 * 4096)
    make_srd(a, sB2, sP + 6, 4096)
    make_srd(a, sOut, sP + 8, 2048 * 1024)
    make_srd(a, sO, sP + 10, 2048 * 1024, WS_O)
    make_srd(a, sU, sP + 10, 512 * 3584, WS_U)
    make_srd(a, sG, sP + 10, 8192, WS_G)
    vOuR, vOw2C, vOwoR, vOoC = V.alloc(), V.alloc(), V.alloc(), V.alloc()
    emit_dma_chunk_kc(a, vOuR, vL, vT0, sW)
    a("v_lshrrev_b32 %s, 3, %s" % (v(vT0), v(vL)))
    a("v_lshl_add_u32 %s, %s, 10, %s" % (v(vOoC), v(vT0), v(vOuR)))
    a("s_movk_i32 %s, 3584" % s(sTmp))
    a("v_mul_lo_u32 %s, %s, %s" % (v(vT0), v(vT0), s(sTmp)))
    a("v_add_u32 %s, %s, %s" % (v(vOuR), v(vOuR), v(vT0)))
    emit_dma_off_tr(a, vOw2C, vL, vT0, 4096, sTmp)
    emit_dma_off_tr(a, vOwoR, vL, vT0, 1024, sTmp)
    sUr, sW2c, sWor, sOc, sW1k, sWS = [S.alloc() for _ in range(6)]
    a("s_lshl_b32 %s, %s, 6" % (s(sUr), s(sDt)))
    a("s_lshl_b32 %s, %s, 3" % (s(sTmp), s(sW)))
    a("s_add_u32 %s, %s, %s" % (s(sUr), s(sUr), s(sTmp)))
    a("s_mul_i32 %s, %s, 3584" % (s(sUr), s(sUr)))
    a("s_lshl_b32 %s, %s, 15" % (s(sW2c), s(sW)))
    a("s_lshl_b32 %s, %s, 7" % (s(sTmp), s(sSt)))
    a("s_add_u32 %s, %s, %s" % (s(sW2c), s(sW2c), s(sTmp)))
    a("s_lshl_b32 %s, %s, 13" % (s(sWor), s(sW)))
    a("s_lshl_b32 %s, %s, 7" % (s(sTmp), s(sDt)))
    a("s_add_u32 %s, %s, %s" % (s(sWor), s(sWor), s(sTmp)))
    a("s_lshl_b32 %s, %s, 6" % (s(sOc), s(sSt)))
    a("s_lshl_b32 %s, %s, 3" % (s(sTmp), s(sW)))
    a("s_add_u32 %s, %s, %s" % (s(sOc), s(sOc), s(sTmp)))
    a("s_lshl_b32 %s, %s, 10" % (s(sOc), s(sOc)))
    a("s_lshl_b32 %s, %s, 10" % (s(sW1k), s(sW)))
    a("s_mov_b32 %s, 0" % s(sWS))

    def adv_ws():
        a("s_add_u32 %s, %s, %d" % (s(sWS), s(sWS), G_SLOT))
        a("s_cmp_eq_u32 %s, %d" % (s(sWS), G_LDS))
        a("s_cselect_b32 %s, 0, %s" % (s(sWS), s(sWS)))

    def issue_B():
        a("s_add_u32 m0, %s, %s" % (s(sWS), s(sW1k)))
        a("s_add_u32 %s, %s, %d" % (s(sTmp), s(sUr), 32 * 3584))
        a("buffer_load_dwordx4 %s, %s, %s offen lds" % (v(vOuR), s(sU, 4), s(sUr)))
        a("s_add_u32 m0, m0, 4096")
        a("s_add_u32 %s, %s, %d" % (s(sTmp2), s(sW2c), 32 * 4096))
        a("buffer_load_dwordx4 %s, %s, %s offen lds" % (v(vOuR), s(sU, 4), s(sTmp)))
        a("s_add_u32 m0, m0, 4096")
        a("s_add_u32 %s, %s, 128" % (s(sUr), s(sUr)))
        a("buffer_load_dwordx4 %s, %s, %s offen lds" % (v(vOw2C), s(sW2, 4), s(sW2c)))
        a("s_add_u32 m0, m0, 4096")
        a("s_add_u32 %s, %s, %d" % (s(sW2c), s(sW2c), 64 * 4096))
        a("buffer_load_dwordx4 %s, %s, %s offen lds" % (v(vOw2C), s(sW2, 4), s(sTmp2)))
        adv_ws()

    def issue_A():
        a("s_add_u32 m0, %s, %s" % (s(sWS), s(sW1k)))
        a("s_add_u32 %s, %s, %d" % (s(sTmp), s(sWor), 32 * 1024))
        a("buffer_load_dwordx4 %s, %s, %s offen lds" % (v(vOwoR), s(sWo, 4), s(sWor)))
        a("s_add_u32 m0, m0, 4096")
        a("s_add_u32 %s, %s, %d" % (s(sTmp2), s(sOc), 32 * 1024))
        a("buffer_load_dwordx4 %s, %s, %s offen lds" % (v(vOwoR), s(sWo, 4), s(sTmp)))
        a("s_add_u32 m0, m0, 4096")
        a("s_add_u32 %s, %s, %d" % (s(sWor), s(sWor), 64 * 1024))
        a("buffer_load_dwordx4 %s, %s, %s offen lds" % (v(vOoC), s(sO, 4), s(sOc)))
        a("s_add_u32 m0, m0, 4096")
        a("s_add_u32 %s, %s, 128" % (s(sOc), s(sOc)))
        a("buffer_load_dwordx4 %s, %s, %s offen lds" % (v(vOoC), s(sO, 4), s(sTmp2)))
        adv_ws()

    for _ in range(G_NS - 1):
        issue_B()
    vRk = V.alloc(4)
    vCt = V.alloc()
    vRt = V.alloc()
    vCk = V.alloc(4)
    sWr, sWc = S.alloc(), S.alloc()
    a("s_and_b32 %s, %s, 1" % (s(sWr), s(sW)))
    a("s_lshr_b32 %s, %s, 1" % (s(sWc), s(sW)))
    emit_kc_addr(a, vRk, vL, vT0, vT1)
    a("s_lshl_b32 %s, %s, 12" % (s(sTmp), s(sWr)))
    a("s_lshl_b32 %s, %s, 12" % (s(sTmp2), s(sWc)))
    a("s_add_u32 %s, %s, 8192" % (s(sTmp2), s(sTmp2)))
    for kk in range(4):
        a("v_add_u32 %s, %s, %s" % (v(vCk + kk), s(sTmp2), v(vRk + kk)))
        a("v_add_u32 %s, %s, %s" % (v(vRk + kk), s(sTmp), v(vRk + kk)))
    emit_tr_addr(a, vCt, vL, vT0, vT1, s(sWc), 8192)
    emit_tr_addr(a, vRt, vL, vT0, vT1, s(sWr))
    vSi, vG, vB2 = V.alloc(), V.alloc(), V.alloc()
    a("v_and_b32 %s, 31, %s" % (v(vSi), v(vL)))
    a("s_lshl_b32 %s, %s, 6" % (s(sTmp), s(sSt)))
    a("s_lshl_b32 %s, %s, 5" % (s(sTmp2), s(sWc)))
    a("s_add_u32 %s, %s, %s" % (s(sTmp), s(sTmp), s(sTmp2)))
    a("v_add_u32 %s, %s, %s" % (v(vSi), s(sTmp), v(vSi)))
    a("v_lshlrev_b32 %s, 2, %s" % (v(vT0), v(vSi)))
    a("v_lshlrev_b32 %s, 1, %s" % (v(vT1), v(vSi)))
    a("buffer_load_dword %s, %s, %s, 0 offen" % (v(vG), v(vT0), s(sG, 4)))
    a("buffer_load_ushort %s, %s, %s, 0 offen" % (v(vB2), v(vT1), s(sB2, 4)))
    vAccA = V.alloc(16, 4)
    vAccB = V.alloc(16, 4)
    for i in range(16):
        a("v_mov_b32 %s, 0" % v(vAccA + i))
        a("v_mov_b32 %s, 0" % v(vAccB + i))
    vF = [V.alloc(8, 4), V.alloc(8, 4)]

    def read_B(fs, kk):
        b = vF[fs]
        a("ds_read_b128 %s, %s" % (v(b, 4), v(vRk + kk)))
        a("ds_read_b64_tr_b16 %s, %s offset:%d" % (v(b + 4, 2), v(vCt), kk * 2048))
        a("ds_read_b64_tr_b16 %s, %s offset:%d" % (v(b + 6, 2), v(vCt), kk * 2048 + 512))

    def read_A(fs, kk):
        b = vF[fs]
        a("ds_read_b64_tr_b16 %s, %s offset:%d" % (v(b, 2), v(vRt), kk * 2048))
        a("ds_read_b64_tr_b16 %s, %s offset:%d" % (v(b + 2, 2), v(vRt), kk * 2048 + 512))
        a("ds_read_b128 %s, %s" % (v(b + 4, 4), v(vCk + kk)))

    sRS, sD, sI = S.alloc(), S.alloc(), S.alloc()
    a("s_mov_b32 %s, 0" % s(sRS))
    a("s_waitcnt vmcnt(%d)" % (4 * (G_NS - 2) + 2))
    a("s_barrier")
    read_B(0, 0)
    allad = [vRk + i for i in range(4)] + [vCk + i for i in range(4)] + [vCt, vRt]

    def body(label, count, issue, rd, rd_next_last, acc):
        a("s_mov_b32 %s, 0" % s(sI))
        a.label(label)
        a("s_waitcnt vmcnt(%d)" % (4 * (G_NS - 3)))
        a("s_barrier")
        issue()
        for kk in range(4):
            a("s_waitcnt lgkmcnt(0)")
            if kk == 3:
                ring_advance(a, sRS, sD, G_SLOT, G_LDS)
                for r in allad:
                    a("v_add_u32 %s, %s, %s" % (v(r), s(sD), v(r)))
                if rd_next_last is not rd:
                    a("s_cmp_eq_u32 %s, %d" % (s(sI), count - 1))
                    a("s_cbranch_scc1 %s_SW" % label)
                    rd(0, 0)
                    a("s_branch %s_J" % label)
                    a.label(label + "_SW")
                    rd_next_last(0, 0)
                    a.label(label + "_J")
                else:
                    rd(0, 0)
            else:
                rd((kk + 1) & 1, kk + 1)
            b = vF[kk & 1]
            a("v_mfma_f32_32x32x16_bf16 %s, %s, %s, %s" % (v(acc, 16), v(b, 4), v(b + 4, 4), v(acc, 16)))
        a("s_add_u32 %s, %s, 1" % (s(sI), s(sI)))
        a("s_cmp_lt_u32 %s, %d" % (s(sI), count))
        a("s_cbranch_scc1 %s" % label)

    nb1 = 28 - (G_NS - 1)
    body("K3_B1", nb1, issue_B, read_B, read_B, vAccB)
    body("K3_B2", G_NS - 1, issue_A, read_B, read_A, vAccB)
    a("s_mov_b32 %s, 0x40000000" % s(sOc))
    body("K3_A", 8, issue_A, read_A, read_A, vAccA)
    a("s_waitcnt vmcnt(0) lgkmcnt(0)")
    a("s_nop 7")
    a("s_nop 7")
    vX = V.alloc(16)
    vY = V.alloc(16)
    vZ = V.alloc(8)
    vOmG = V.alloc()
    a("v_lshlrev_b32 %s, 16, %s" % (v(vB2), v(vB2)))
    a("v_sub_f32 %s, 1.0, %s" % (v(vOmG), v(vG)))
    bf16_round(a, vOmG, vOmG)

    def round16(dst, src):
        for i in range(8):
            a("v_cvt_pk_bf16_f32 %s, %s, %s" % (v(vZ + i), v(src + 2 * i), v(src + 2 * i + 1)))
        for i in range(8):
            a("v_lshlrev_b32 %s, 16, %s" % (v(dst + 2 * i), v(vZ + i)))
            a("v_and_b32 %s, 0xffff0000, %s" % (v(dst + 2 * i + 1), v(vZ + i)))

    round16(vX, vAccA)
    for i in range(16):
        a("v_mul_f32 %s, %s, %s" % (v(vX + i), v(vX + i), v(vG)))
    round16(vX, vX)
    round16(vY, vAccB)
    for i in range(16):
        a("v_add_f32 %s, %s, %s" % (v(vY + i), v(vY + i), v(vB2)))
    round16(vY, vY)
    for i in range(16):
        a("v_mul_f32 %s, %s, %s" % (v(vY + i), v(vY + i), v(vOmG)))
    round16(vY, vY)
    for i in range(16):
        a("v_add_f32 %s, %s, %s" % (v(vX + i), v(vX + i), v(vY + i)))
    vOut = vAccA
    for i in range(8):
        a("v_cvt_pk_bf16_f32 %s, %s, %s" % (v(vOut + i), v(vX + 2 * i), v(vX + 2 * i + 1)))
    a("v_lshlrev_b32 %s, 10, %s" % (v(vT0), v(vSi)))
    a("v_lshrrev_b32 %s, 5, %s" % (v(vT1), v(vL)))
    a("v_lshl_add_u32 %s, %s, 3, %s" % (v(vT0), v(vT1), v(vT0)))
    a("s_lshl_b32 %s, %s, 7" % (s(sTmp), s(sDt)))
    a("s_lshl_b32 %s, %s, 6" % (s(sTmp2), s(sWr)))
    a("s_add_u32 %s, %s, %s" % (s(sTmp), s(sTmp), s(sTmp2)))
    for g in range(4):
        a("buffer_store_dwordx2 %s, %s, %s, %s offen offset:%d" % (v(vOut + 2 * g, 2), v(vT0), s(sOut, 4), s(sTmp), 16 * g))
    a.label("K3_END")
    a("s_endpgm")
    return name, V.high, S.high


def main():
    out = sys.argv[1] if len(sys.argv) > 1 else "cdna_kernels/%s.s" % NAME
    a = Asm()
    a.raw("; @launch kernel=k1_kernel grid=(256,1,1) block=(256,1,1) lds=%d" % K1_LDS)
    a.raw("; @launch kernel=k2_kernel grid=(224,1,1) block=(256,1,1) lds=%d" % G_LDS)
    a.raw("; @launch kernel=k3_kernel grid=(256,1,1) block=(256,1,1) lds=%d" % G_LDS)
    a.raw('.amdgcn_target "amdgcn-amd-amdhsa--gfx950"')
    a.raw(".text")
    infos = [gen_k1(a), gen_k2(a), gen_k3(a)]
    a.raw('.section .rodata,"a"')
    for name, nv, ns in infos:
        a.raw(".p2align 6")
        descriptor(a, name, nv, ns + 6)
    open(out, "w").write(a.text())
    for i in infos:
        print(i)


if __name__ == "__main__":
    main()
```
